```python
import torch

def _softmax(x, axis=-1):
    return torch.softmax(x, dim=axis)
def _gelu(x):
    return torch.nn.functional.gelu(x, approximate="tanh")
def _silu(x):
    return torch.nn.functional.silu(x)
def _sigmoid(x):
    return torch.sigmoid(x)
def _layernorm(x, axis=-1, eps=1e-5):
    m = x.mean(dim=axis, keepdim=True)
    v = x.var(dim=axis, keepdim=True, unbiased=False)
    return (x - m) / torch.sqrt(v + eps)
def _scatter_add(tgt, idx, src, axis=0):
    return tgt.clone().index_add_(axis, idx, src)
def _segment_sum(src, seg, n):
    out = torch.zeros((n,) + src.shape[1:], dtype=src.dtype)
    return out.index_add_(0, seg, src)
def _pad(x, pw):
    flat = tuple(v for pair in reversed(pw) for v in pair)
    return torch.nn.functional.pad(x, flat)

kernel_name = 'sequential_preLN__spectral_fnet__dense_activation_squared_relu__prompt'

def setup_inputs():

    _w = (lambda a: (lambda t: t.to(torch.bfloat16) if t.is_floating_point() else t)(torch.as_tensor(a)))
    def _A_setup():
        B, S, D = 1, 2048, 640
        ns = torch.arange(S)[:, None] * torch.arange(S)[None, :]
        nd = torch.arange(D)[:, None] * torch.arange(D)[None, :]
        Ws_re = torch.cos(-2.0 * torch.pi * ns / S).to(float)
        Ws_im = torch.sin(-2.0 * torch.pi * ns / S).to(float)
        Wd_re = torch.cos(-2.0 * torch.pi * nd / D).to(float)
        Wd_im = torch.sin(-2.0 * torch.pi * nd / D).to(float)
        return {
            "x": _w((lambda *s: torch.randn(*s, dtype=torch.bfloat16) * 0.05)(B, S, D)),
            "dft_seq_re": _w(Ws_re),
            "dft_seq_im": _w(Ws_im),
            "dft_hid_re": _w(Wd_re),
            "dft_hid_im": _w(Wd_im),
        }
    _A_in = _A_setup()

    def _B_setup():
        B, S, D, F = 1, 2048, 640, 1536
        return {
            "x": _w((lambda *s: torch.randn(*s, dtype=torch.bfloat16) * 0.05)(B, S, D)),
            "w1": _w((lambda *s: torch.randn(*s, dtype=torch.bfloat16) * 0.2)(D, F)),
            "b1": _w((lambda *s: torch.randn(*s, dtype=torch.bfloat16) * 0.2)(F)),
            "w2": _w((lambda *s: torch.randn(*s, dtype=torch.bfloat16) * 0.2)(F, D)),
            "b2": _w((lambda *s: torch.randn(*s, dtype=torch.bfloat16) * 0.2)(D)),
        }
    _B_in = _B_setup()

    return {
        "A_x": _A_in["x"],
        "A_dft_seq_re": _A_in["dft_seq_re"],
        "A_dft_seq_im": _A_in["dft_seq_im"],
        "A_dft_hid_re": _A_in["dft_hid_re"],
        "A_dft_hid_im": _A_in["dft_hid_im"],
        "B_x": _B_in["x"],
        "B_w1": _B_in["w1"],
        "B_b1": _B_in["b1"],
        "B_w2": _B_in["w2"],
        "B_b2": _B_in["b2"],
    }

def reference(A_x, A_dft_seq_re, A_dft_seq_im, A_dft_hid_re, A_dft_hid_im, B_x, B_w1, B_b1, B_w2, B_b2):
    def _A_ref(x, dft_seq_re, dft_seq_im, dft_hid_re, dft_hid_im):
        a = torch.einsum("bsd,ed->bse", x, dft_hid_re)
        b = torch.einsum("bsd,ed->bse", x, dft_hid_im)
        y = torch.einsum("ts,bse->bte", dft_seq_re, a) - torch.einsum("ts,bse->bte", dft_seq_im, b)
        return y

    def _B_ref(x, w1, b1, w2, b2):
        h = torch.einsum("bsd,df->bsf", x, w1) + b1
        zero = torch.zeros_like(h)
        r = torch.where(h > zero, h, zero)
        h = r * r
        out = torch.einsum("bsf,fd->bsd", h, w2) + b2
        return out

    x = A_x
    h = x + _A_ref(_layernorm(x, axis=-1), A_dft_seq_re, A_dft_seq_im, A_dft_hid_re, A_dft_hid_im)
    h2 = h + _B_ref(_layernorm(h, axis=-1), B_w1, B_b1, B_w2, B_b2)
    return h2
```

```python
import struct
def f2u(x): return struct.unpack("<I", struct.pack("<f", x))[0]
def fl(x): return "0x%08x" % f2u(x)

class A:
    def __init__(self):
        self.L = []
        self.uid = 0
    def __call__(self, s):
        for line in s.strip("\n").split("\n"):
            self.L.append(" " + line.strip())
    def label(self, n): self.L.append(n + ":")
    def newlabel(self, p="L"):
        self.uid += 1
        return f"{p}_{self.uid}"
    def c(self, s): self.L.append(" ; " + s)
    def text(self): return "\n".join(self.L) + "\n"
    def nop(self, n):
        while n > 0:
            k = min(n, 16)
            self(f"s_nop {k-1}")
            n -= k

def v(i, n=1): return f"v{i}" if n == 1 else f"v[{i}:{i+n-1}]"
def a(i, n=1): return f"a{i}" if n == 1 else f"a[{i}:{i+n-1}]"
def s(i, n=1): return f"s{i}" if n == 1 else f"s[{i}:{i+n-1}]"

def kd(name, vgpr, agpr=0, sgpr=96):
    acc = (vgpr + 3) // 4 * 4
    nfv = acc + agpr if agpr else vgpr
    return f""".p2align 6
.amdhsa_kernel {name}
  .amdhsa_next_free_vgpr {nfv}
  .amdhsa_next_free_sgpr {sgpr}
  .amdhsa_accum_offset {acc}
  .amdhsa_group_segment_fixed_size 0
  .amdhsa_kernarg_size 104
  .amdhsa_user_sgpr_count 2
  .amdhsa_user_sgpr_kernarg_segment_ptr 1
  .amdhsa_system_sgpr_workgroup_id_x 1
.end_amdhsa_kernel
"""
def head(name):
    return f".globl {name}\n.p2align 8\n.type {name},@function\n{name}:\n"
```

```python
from asmlib import *
from layout import *

K1_LDS_PART = 81920
K1_LDS_R    = K1_LDS_PART + 1024
K1_LDS_VST  = K1_LDS_R + 1280
K1_LDS      = K1_LDS_VST + 5 * 2048

def gen_k1(name="k1_kernel"):
    p = A()
    p(f"""
    s_cmp_ge_u32 s2, 256
    s_cbranch_scc1 K1_END
    s_load_dwordx2 s[4:5], s[0:1], 0
    s_load_dwordx2 s[16:17], s[0:1], 96
    s_load_dwordx2 s[24:25], s[0:1], 48
    s_load_dwordx2 s[28:29], s[0:1], 56
    s_load_dwordx2 s[12:13], s[0:1], 64
    v_lshrrev_b32 v1, 6, v0
    v_and_b32 v0, 63, v0
    v_readfirstlane_b32 s3, v1
    s_and_b32 s20, s2, 7
    s_lshl_b32 s20, s20, 2
    s_bfe_u32 s21, s2, 0x20003
    s_add_u32 s20, s20, s21
    s_lshr_b32 s21, s2, 5
    s_mov_b32 s6, 2621440
    s_mov_b32 s7, 0x20000
    s_mov_b32 s18, {WS_SIZE}
    s_mov_b32 s19, 0x20000
    s_mov_b32 s26, 1966080
    s_mov_b32 s27, 0x20000
    s_mov_b32 s30, 3072
    s_mov_b32 s31, 0x20000
    s_mov_b32 s14, 1966080
    s_mov_b32 s15, 0x20000
    v_and_b32 v1, 15, v0
    v_lshrrev_b32 v2, 4, v0
    s_cmp_ge_u32 s3, 5
    s_cbranch_scc1 K1_NOTDFT
    """)
    WD, CC, ACC, AF = 16, 56, 88, 120
    p.c("DFT wave: blk = 5*es + w -> s22")
    p(f"""
    s_mul_i32 s22, s21, 5
    s_add_u32 s22, s22, s3
    s_lshl_b32 s23, s22, 3
    s_add_u32 s23, s23, 1
    v_bfe_u32 v7, v1, 1, 1
    v_lshlrev_b32 v7, 2, v7
    v_lshrrev_b32 v12, 2, v1
    v_add3_u32 v7, v7, v12, s23
    v_cvt_f32_u32 v3, v7
    v_mul_f32 v3, {fl(1.0/640.0)}, v3
    v_lshlrev_b32 v5, 31, v7
    v_or_b32 v5, 1.0, v5
    v_and_b32 v12, 1, v1
    v_cvt_f32_u32 v13, v12
    v_mul_f32 v13, {fl(0.25)}, v13
    v_mul_u32_u24 v6, 0x8000, v12
    v_lshl_or_b32 v6, v6, 16, v6
    v_lshlrev_b32 v14, 3, v2
    v_cvt_f32_u32 v14, v14
    v_fma_f32 v13, v3, v14, v13
    v_mul_f32 v4, {fl(32.0)}, v3
    v_cos_f32 v4, v4
    """)
    T0, T1 = AF, AF + 8
    for ks in range(2):
        for j in range(8):
            r = (T0, T1)[ks] + j
            k = 32 * ks + j
            if k == 0:
                p(f"v_cos_f32 {v(r)}, v13")
            else:
                p(f"v_fmamk_f32 {v(r)}, v3, {fl(float(k))}, v13")
                p(f"v_cos_f32 {v(r)}, {v(r)}")
    p("v_add_f32 v4, v4, v4")
    for ks in range(10):
        cur = (T0, T1)[ks & 1]; prev = (T1, T0)[ks & 1]
        if ks >= 2:
            for j in range(8):
                p(f"v_fma_f32 {v(cur+j)}, v4, {v(prev+j)}, -{v(cur+j)}")
        for jp in range(4):
            p(f"v_cvt_pk_bf16_f32 {v(WD+4*ks+jp)}, {v(cur+2*jp)}, {v(cur+2*jp+1)}")
    p.c("C frags")
    C0, S0 = AF + 16, AF + 24
    for b in range(2):
        p(f"""
        v_lshl_add_u32 v12, v1, 1, {b}
        v_cvt_f32_u32 v12, v12
        v_mul_f32 v12, {fl(1.0/64.0)}, v12
        v_mul_f32 v15, v12, v14
        """)
        for j in range(8):
            if j == 0:
                p(f"v_cos_f32 {v(C0)}, v15")
                p(f"v_sin_f32 {v(S0)}, v15")
            else:
                p(f"v_fmamk_f32 {v(S0+j)}, v12, {fl(float(j))}, v15")
                p(f"v_cos_f32 {v(C0+j)}, {v(S0+j)}")
                p(f"v_sin_f32 {v(S0+j)}, {v(S0+j)}")
        p("s_nop 0")
        for aa in range(2):
            ng = "-" if aa else ""
            for jp in range(4):
                p(f"v_cvt_pk_bf16_f32 {v(CC+(2*aa+b)*4+jp)}, {v(C0+2*jp)}, {ng}{v(C0+2*jp+1)}")
                p(f"v_cvt_pk_bf16_f32 {v(CC+16+(2*aa+b)*4+jp)}, {v(S0+2*jp)}, {ng}{v(S0+2*jp+1)}")
    p.c("LDS frag addresses")
    for ksl in range(4):
        p(f"""
        v_add_u32 v12, {4*ksl}, v2
        v_xor_b32 v12, v12, v1
        v_lshlrev_b32 v12, 4, v12
        v_lshl_add_u32 {v(8+ksl)}, v1, 8, v12
        """)
    def rd(ks, st):
        q, ksl = ks >> 2, ks & 3
        for T in range(4):
            off = (q & 3) * 16384 + T * 4096
            p(f"ds_read_b128 {v(AF+16*st+4*T,4)}, {v(8+ksl)} offset:{off}")
    def mm(ks, st):
        h, kk = ks // 10, ks % 10
        for T in range(4):
            d = v(ACC + (4*h+T)*4, 4)
            c = "0" if kk == 0 else d
            p(f"v_mfma_f32_16x16x32_bf16 {d}, {v(AF+16*st+4*T,4)}, {v(WD+4*kk,4)}, {c}")
    p("s_waitcnt lgkmcnt(0)")
    for q in range(5):
        if q == 4:
            for ksl in range(4):
                p(f"v_add_u32 {v(8+ksl)}, 0x10000, {v(8+ksl)}")
        p("s_barrier")
        rd(4*q, 0); rd(4*q+1, 1)
        p("s_waitcnt lgkmcnt(4)"); mm(4*q, 0); rd(4*q+2, 0)
        p("s_waitcnt lgkmcnt(4)"); mm(4*q+1, 1); rd(4*q+3, 1)
        p("s_waitcnt lgkmcnt(4)"); mm(4*q+2, 0)
        p("s_waitcnt lgkmcnt(0)"); mm(4*q+3, 1)
    p(f"""
    v_lshlrev_b32 v8, 3, v0
    s_lshl_b32 s23, s3, 8
    s_add_u32 s23, s23, {K1_LDS_R}
    v_lshl_add_u32 v9, v0, 2, s23
    v_lshl_add_u32 v10, v2, 4, s23
    s_lshl_b32 s23, s3, 11
    s_add_u32 s23, s23, {K1_LDS_VST}
    v_lshlrev_b32 v11, 5, v1
    v_lshl_add_u32 v11, v2, 3, v11
    v_add_u32 v11, s23, v11
    v_lshl_add_u32 v12, v0, 3, s23
    v_add_u32 v8, {K1_LDS_PART}, v8
    """)
    for T in range(4):
        for jj in range(4):
            p(f"v_fma_f32 {v(ACC+4*T+jj)}, v5, {v(ACC+16+4*T+jj)}, {v(ACC+4*T+jj)}")
    p("s_barrier")
    R = ACC + 16
    p(f"""
    ds_read_b64 v[120:121], v8
    ds_read_b64 v[122:123], v8 offset:512
    v_lshrrev_b32 v13, 2, v0
    v_and_b32 v14, 3, v0
    s_mov_b32 s23, 81920
    v_mul_lo_u32 v13, v13, s23
    v_lshl_add_u32 v13, v14, 4, v13
    s_lshr_b32 s23, s20, 1
    s_mul_i32 s23, s23, 2560
    s_and_b32 s32, s20, 1
    s_lshl_b32 s32, s32, 3
    s_add_u32 s23, s23, s32
    s_lshl_b32 s32, s22, 6
    s_add_u32 s23, s23, s32
    s_waitcnt lgkmcnt(0)
    v_add_f32 v120, v120, v122
    v_add_f32 v121, v121, v123
    v_mul_f32 v120, {fl(1.0/640.0)}, v120
    v_mul_f32 v121, {fl(1.0/640.0)}, v121
    v_fma_f32 v121, -v120, v120, v121
    v_max_f32 v121, 0, v121
    v_add_f32 v121, {fl(1e-5)}, v121
    v_rsq_f32 v121, v121
    s_nop 0
    ds_write_b32 v9, v121
    """)
    for T in range(4):
        p(f"ds_read_b128 {v(R+4*T,4)}, v10 offset:{64*T}")
    p("s_waitcnt lgkmcnt(0)")
    for Tp in range(2):
        for jj in range(4):
            j = 4*Tp + jj
            p(f"v_mul_f32 {v(AF+j)}, {v(R+4*Tp+jj)}, {v(ACC+4*Tp+jj)}")
            p(f"v_fma_f32 {v(AF+8+j)}, -{v(R+8+4*Tp+jj)}, {v(ACC+8+4*Tp+jj)}, {v(AF+j)}")
            p(f"v_fma_f32 {v(AF+j)}, {v(R+8+4*Tp+jj)}, {v(ACC+8+4*Tp+jj)}, {v(AF+j)}")
    FR = AF + 16
    for jp in range(4):
        p(f"v_cvt_pk_bf16_f32 {v(FR+jp)}, {v(AF+2*jp)}, {v(AF+2*jp+1)}")
        p(f"v_cvt_pk_bf16_f32 {v(FR+4+jp)}, {v(AF+8+2*jp)}, {v(AF+8+2*jp+1)}")
    p("s_nop 1")
    for jp in range(8):
        p(f"v_xor_b32_dpp {v(FR+8+jp)}, {v(FR+jp)}, v6 quad_perm:[1,0,3,2] row_mask:0xf bank_mask:0xf")
    p("s_nop 1")
    for aa in range(2):
        for b in range(2):
            t = 2*aa + b
            p(f"v_mfma_f32_16x16x32_bf16 {v(ACC+4*t,4)}, {v(FR+4*b,4)}, {v(CC+4*t,4)}, 0")
    for aa in range(2):
        for b in range(2):
            t = 2*aa + b
            p(f"v_mfma_f32_16x16x32_bf16 {v(ACC+4*t,4)}, {v(FR+8+4*b,4)}, {v(CC+16+4*t,4)}, {v(ACC+4*t,4)}")
    p.nop(5)
    for t in range(4):
        p(f"v_cvt_pk_bf16_f32 {v(AF+2*t)}, {v(ACC+4*t)}, {v(ACC+4*t+1)}")
        p(f"v_cvt_pk_bf16_f32 {v(AF+2*t+1)}, {v(ACC+4*t+2)}, {v(ACC+4*t+3)}")
        p(f"ds_write_b64 v11, {v(AF+2*t,2)} offset:{512*t}")
    for t in range(4):
        p(f"ds_read_b64 {v(AF+8+2*t,2)}, v12 offset:{512*t}")
    for t in range(4):
        aa, b = t >> 1, t & 1
        p(f"s_add_u32 s32, s23, {V_OFF + (32*aa + b) * 40960}")
        p(f"s_waitcnt lgkmcnt({3-t})")
        p(f"buffer_store_dwordx2 {v(AF+8+2*t,2)}, v13, s[16:19], s32 offen")
    p("s_endpgm")

    p.label("K1_NOTDFT")
    p("""
    s_cmp_ge_u32 s3, 7
    s_cbranch_scc1 K1_NOTDMA
    """)
    p.c("DMA + stats waves 5,6: hh = w-5 -> s22")
    p(f"""
    s_sub_u32 s22, s3, 5
    s_mov_b32 s23, 40960
    v_mul_lo_u32 v3, v2, s23
    """)
    for gm in range(4):
        p(f"""
        v_add_u32 v12, {4*gm}, v2
        v_xor_b32 v12, v12, v1
        v_lshl_add_u32 v12, v12, 4, v3
        v_add_u32 {v(4+gm)}, {8*gm*40960}, v12
        """)
    p(f"""
    s_mul_i32 s23, s20, 1280
    s_mul_i32 s32, s22, {32*40960}
    s_add_u32 s23, s23, s32
    s_add_u32 s33, s23, {4*40960}
    s_lshl_b32 s34, s22, 13
    s_waitcnt lgkmcnt(0)
    """)
    for q in range(5):
        for ii in range(8):
            p(f"s_add_u32 m0, s34, {q*16384 + ii*1024}")
            if ii == 0 and q > 0:
                p("s_add_u32 s23, s23, 256")
            elif ii == 4 and q > 0:
                p("s_add_u32 s33, s33, 256")
            else:
                p("s_nop 0")
            p(f"buffer_load_dwordx4 {v(4+(ii&3))}, s[4:7], {'s23' if ii < 4 else 's33'} offen lds")
    p(f"""
    v_xor_b32 v3, s22, v1
    v_lshlrev_b32 v3, 4, v3
    v_lshl_add_u32 v8, v0, 8, v3
    """)
    for k in range(1, 8):
        p(f"v_xor_b32 {v(8+k)}, {k<<5}, v8")
    p(f"""
    v_mov_b32 v4, 0
    v_mov_b32 v5, 0
    v_mov_b32 v6, 0
    v_mov_b32 v7, 0
    s_mov_b32 s35, 0x3f803f80
    """)
    for q in range(5):
        if q == 4:
            for k in range(8):
                p(f"v_add_u32 {v(8+k)}, 0x10000, {v(8+k)}")
        p(f"s_waitcnt vmcnt({32-8*q})")
        p("s_barrier")
        for k in range(8):
            p(f"ds_read_b128 {v(16+4*k,4)}, {v(8+k)} offset:{(q&3)*16384}")
        for k in range(8):
            p(f"s_waitcnt lgkmcnt({7-k})")
            for r in range(4):
                p(f"v_dot2_f32_bf16 {v(4+(r&1))}, {v(16+4*k+r)}, s35, {v(4+(r&1))}")
                p(f"v_dot2_f32_bf16 {v(6+(r&1))}, {v(16+4*k+r)}, {v(16+4*k+r)}, {v(6+(r&1))}")
    p(f"""
    s_lshl_b32 s23, s22, 9
    s_add_u32 s23, s23, {K1_LDS_PART}
    v_lshl_add_u32 v3, v0, 3, s23
    s_nop 1
    v_add_f32 v4, v4, v5
    v_add_f32 v5, v6, v7
    ds_write_b64 v3, v[4:5]
    s_waitcnt lgkmcnt(0)
    s_barrier
    s_endpgm
    """)
    p.label("K1_NOTDMA")
    p("""
    s_cmp_ge_u32 s3, 8
    s_cbranch_scc1 K1_NOTXP
    """)
    p.c("XP wave 7")
    p(f"""
    v_lshrrev_b32 v3, 5, v0
    v_and_b32 v4, 31, v0
    v_lshl_add_u32 v5, v4, 1, v3
    v_lshrrev_b32 v6, 5, v5
    v_lshlrev_b32 v6, 5, v6
    v_bfe_u32 v7, v5, 2, 1
    v_lshl_add_u32 v6, v7, 4, v6
    v_bfe_u32 v7, v5, 3, 2
    v_lshlrev_b32 v7, 2, v7
    v_and_b32 v8, 3, v5
    v_add_u32 v7, v7, v8
    v_add_u32 v6, v6, v7
    v_lshlrev_b32 v6, 8, v6
    v_lshl_add_u32 v6, v7, 4, v6
    s_mov_b32 s23, {32*40960}
    v_mul_lo_u32 v3, v3, s23
    v_lshl_add_u32 v3, v4, 4, v3
    s_mul_i32 s22, s21, 5
    s_mul_i32 s23, s20, 40960
    s_lshl_b32 s32, s22, 9
    s_add_u32 s23, s23, s32
    s_add_u32 s23, s23, {XP_OFF}
    s_add_u32 s33, s23, 20480
    """)
    def laddr(dst, sc):
        p(f"""
        s_and_b32 s34, {sc}, 15
        s_lshl_b32 s34, s34, 4
        s_lshr_b32 s35, {sc}, 4
        s_lshl_b32 s35, s35, 14
        s_or_b32 s34, s34, s35
        v_xor_b32 {dst}, s34, v6
        """)
    for k in range(6):
        p(f"s_add_u32 s32, s22, {k}")
        laddr(v(8+k), "s32")
    for k in range(5):
        p(f"s_sub_u32 s32, {79-k}, s22")
        laddr(v(16+k), "s32")
    p("s_waitcnt lgkmcnt(0)")
    for q in range(5):
        p("s_barrier")
    for k in range(5):
        p(f"ds_read_b128 {v(24+4*k,4)}, {v(8+k)}")
    p(f"ds_read_b32 v44, v13")
    p(f"ds_read_b32 v45, v6")
    for k in range(5):
        p(f"ds_read_b128 {v(48+4*k,4)}, {v(16+k)}")
    p("s_waitcnt lgkmcnt(5)")
    for k in range(5):
        for r in range(4):
            p(f"v_alignbit_b32 {v(68+4*k+r)}, {v(24+4*k+r+1)}, {v(24+4*k+r)}, 16")
        p(f"buffer_store_dwordx4 {v(68+4*k,4)}, v3, s[16:19], s23 offen offset:{512*k}")
    p(f"""
    s_waitcnt lgkmcnt(0)
    s_cmp_lg_u32 s21, 7
    s_cbranch_scc1 K1_XP_NOSPEC
    s_mov_b32 s34, 0xffff
    v_bfi_b32 v64, s34, v45, v64
    """)
    p.label("K1_XP_NOSPEC")
    for k in range(5):
        p(f"buffer_store_dwordx4 {v(48+4*k,4)}, v3, s[16:19], s33 offen offset:{512*k}")
    p("s_endpgm")

    p.label("K1_NOTXP")
    p("""
    s_cmp_ge_u32 s3, 11
    s_cbranch_scc1 K1_COLSUM
    s_cmp_ge_u32 s2, 240
    s_cbranch_scc1 K1_END
    s_cmp_ge_u32 s3, 9
    s_cbranch_scc1 K1_W2
    """)
    p.c("W1 repack wave 8: ks = wg/12 (s22), blk = wg%12 (s23)")
    p(f"""
    s_mul_i32 s22, s2, 5462
    s_lshr_b32 s22, s22, 16
    s_mul_i32 s23, s22, 12
    s_sub_u32 s23, s2, s23
    s_mov_b32 s38, -3072
    s_cmp_lt_u32 s22, 10
    s_cselect_b32 s32, 8, -8
    s_cselect_b32 s33, 3072, s38
    s_cselect_b32 s34, 0, {7*3072}
    s_lshl_b32 s35, s22, 5
    s_add_u32 s36, s35, 1
    s_sub_u32 s37, {632+320}, s35
    s_cmp_lt_u32 s22, 10
    s_cselect_b32 s36, s36, s37
    v_mul_i32_i24 v3, s32, v2
    v_add_u32 v3, s36, v3
    v_mul_u32_u24 v3, 3072, v3
    v_lshlrev_b32 v4, 4, v1
    s_lshl_b32 s35, s23, 8
    v_add_u32 v4, s35, v4
    v_add_u32 v3, v3, v4
    v_mov_b32 v5, v3
    s_cmp_lg_u32 s22, 19
    s_cbranch_scc1 K1_W1_NOSPEC
    v_cmp_eq_u32 vcc, 3, v2
    s_nop 1
    v_cndmask_b32 v5, v3, v4, vcc
    """)
    p.label("K1_W1_NOSPEC")
    p("s_waitcnt lgkmcnt(0)")
    for j in range(8):
        p(f"buffer_load_dwordx4 {v(8+4*j,4)}, {'v5' if j == 7 else 'v3'}, s[24:27], s34 offen")
        if j < 7: p("s_add_u32 s34, s34, s33")
    p(f"""
    s_mul_i32 s35, s23, {8*20*1024}
    s_lshl_b32 s36, s22, 10
    s_add_u32 s35, s35, s36
    s_add_u32 s35, s35, {W1P_OFF}
    v_lshlrev_b32 v3, 4, v0
    s_mov_b32 s36, 0x05040100
    s_mov_b32 s37, 0x07060302
    s_barrier
    s_waitcnt vmcnt(0)
    """)
    for u in range(8):
        for jp in range(4):
            p(f"v_perm_b32 {v(40+4*u+jp)}, {v(8+4*(2*jp+1)+(u>>1))}, {v(8+4*(2*jp)+(u>>1))}, {'s37' if u&1 else 's36'}")
        p(f"buffer_store_dwordx4 {v(40+4*u,4)}, v3, s[16:19], s35 offen")
        if u < 7: p(f"s_add_u32 s35, s35, {20*1024}")
    p("s_endpgm")

    p.label("K1_W2")
    p.c("W2 repack waves 9,10: uu = 2wg + w-9 ; ks2 = uu/10 (s22), cg = uu%10 (s23)")
    p(f"""
    s_lshl_b32 s32, s2, 1
    s_add_u32 s32, s32, s3
    s_sub_u32 s32, s32, 9
    s_mul_i32 s22, s32, 6554
    s_lshr_b32 s22, s22, 16
    s_mul_i32 s23, s22, 10
    s_sub_u32 s23, s32, s23
    s_mul_i32 s32, s22, 3
    s_add_u32 s33, s32, 1
    s_mul_i32 s34, s22, 6
    s_sub_u32 s34, s34, {6*32-2}
    s_add_u32 s35, s34, 3
    s_cmp_lt_u32 s22, 32
    s_cselect_b32 s32, s32, s34
    s_cselect_b32 s33, s33, s35
    """)
    for t in (32, 33):
        p(f"""
        s_lshr_b32 s34, s{t}, 3
        s_lshl_b32 s34, s34, 7
        s_and_b32 s35, s{t}, 7
        s_add_u32 s34, s34, s35
        s_mul_i32 s34, s34, 1280
        s_lshl_b32 s35, s23, 7
        s_add_u32 s{t}, s34, s35
        """)
    p(f"""
    v_mul_u32_u24 v3, {32*1280}, v2
    v_lshl_add_u32 v3, v1, 1, v3
    s_waitcnt lgkmcnt(0)
    """)
    for j in range(8):
        sr = "s32" if j < 4 else "s33"
        for tt in range(4):
            p(f"buffer_load_ushort {v(8+8*tt+j)}, v3, s[12:15], {sr} offen offset:{32*tt}")
        if (j & 3) < 3: p(f"s_add_u32 {sr}, {sr}, {8*1280}")
    p(f"""
    s_mul_i32 s35, s23, {4*48*1024}
    s_lshl_b32 s36, s22, 10
    s_add_u32 s35, s35, s36
    s_add_u32 s35, s35, {W2P_OFF}
    v_lshlrev_b32 v3, 4, v0
    s_barrier
    s_waitcnt vmcnt(0)
    """)
    for tt in range(4):
        for jp in range(4):
            p(f"v_lshl_or_b32 {v(40+4*tt+jp)}, {v(8+8*tt+2*jp+1)}, 16, {v(8+8*tt+2*jp)}")
        p(f"buffer_store_dwordx4 {v(40+4*tt,4)}, v3, s[16:19], s35 offen")
        if tt < 3: p(f"s_add_u32 s35, s35, {48*1024}")
    p("s_endpgm")

    p.label("K1_COLSUM")
    p(f"""
    s_cmp_ge_u32 s2, 96
    s_cbranch_scc1 K1_END
    v_and_b32 v3, 1, v0
    v_lshrrev_b32 v4, 1, v0
    v_mul_u32_u24 v4, 3072, v4
    v_lshl_add_u32 v4, v3, 4, v4
    v_lshlrev_b32 v5, 4, v3
    s_lshl_b32 s22, s2, 5
    s_mov_b32 s23, s22
    s_waitcnt lgkmcnt(0)
    buffer_load_dwordx4 v[96:99], v5, s[28:31], s22 offen
    """)
    for it in range(20):
        p(f"buffer_load_dwordx4 {v(16+4*it,4)}, v4, s[24:27], s23 offen")
        if it < 19: p(f"s_add_u32 s23, s23, {32*3072}")
    for u in range(8):
        p(f"v_mov_b32 {v(8+u)}, 0")
    p(f"""
    s_mov_b32 s32, 0x00003f80
    s_mov_b32 s33, 0x3f800000
    s_barrier
    """)
    for q in range(5):
        p("s_barrier")
        p(f"s_waitcnt vmcnt({16-4*q})")
        for it in range(4*q, 4*q+4):
            for u in range(8):
                p(f"v_dot2_f32_bf16 {v(8+u)}, {v(16+4*it+(u>>1))}, {'s33' if u&1 else 's32'}, {v(8+u)}")
    p("s_nop 2")
    for dpp in ("quad_perm:[2,3,0,1]", "row_ror:4", "row_ror:8"):
        for u in range(8):
            p(f"v_add_f32_dpp {v(8+u)}, {v(8+u)}, {v(8+u)} {dpp} row_mask:0xf bank_mask:0xf")
    for op in ("v_permlane16_swap_b32", "v_permlane32_swap_b32"):
        for u in range(8):
            p(f"v_mov_b32 {v(16+u)}, {v(8+u)}")
        p("s_nop 1")
        for u in range(8):
            p(f"{op} {v(8+u)}, {v(16+u)}")
        p("s_nop 1")
        for u in range(8):
            p(f"v_add_f32 {v(8+u)}, {v(8+u)}, {v(16+u)}")
    for u in range(8):
        if u & 1: p(f"v_and_b32 {v(16+u)}, 0xffff0000, {v(96+(u>>1))}")
        else:     p(f"v_lshlrev_b32 {v(16+u)}, 16, {v(96+(u>>1))}")
    p(f"""
    s_lshr_b32 s22, s2, 3
    s_lshl_b32 s22, s22, 9
    s_and_b32 s23, s2, 7
    s_lshl_b32 s23, s23, 3
    s_add_u32 s22, s22, s23
    s_add_u32 s22, s22, {CS_OFF}
    s_add_u32 s23, s22, {B1F_OFF-CS_OFF}
    v_lshlrev_b32 v3, 2, v0
    s_mov_b64 exec, 3
    """)
    for u in range(8):
        p(f"buffer_store_dword {v(8+u)}, v3, s[16:19], s22 offen offset:{64*u}")
        p(f"buffer_store_dword {v(16+u)}, v3, s[16:19], s23 offen offset:{64*u}")
    p.label("K1_END")
    p("s_endpgm")
    return head(name) + p.text(), kd(name, 152), f"; @launch kernel={name} grid=(256,1,1) block=(768,1,1) lds={K1_LDS}\n"
```

```python
from asmlib import *
from layout import *

K2_LDS_ST = 81920
K2_LDS = K2_LDS_ST + 512

def gen_k2(name="k2_kernel"):
    p = A()
    p(f"""
    s_cmp_ge_u32 s2, 256
    s_cbranch_scc1 K2_END
    s_load_dwordx2 s[16:17], s[0:1], 96
    v_lshrrev_b32 v1, 6, v0
    v_and_b32 v0, 63, v0
    v_readfirstlane_b32 s3, v1
    s_and_b32 s20, s2, 7
    s_lshl_b32 s20, s20, 2
    s_bfe_u32 s21, s2, 0x20003
    s_add_u32 s20, s20, s21
    s_lshr_b32 s21, s2, 5
    s_mov_b32 s18, {WS_SIZE}
    s_mov_b32 s19, 0x20000
    v_and_b32 v1, 15, v0
    v_lshrrev_b32 v2, 4, v0
    s_lshr_b32 s24, s3, 1
    s_and_b32 s25, s3, 1
    s_sub_u32 s26, 64, s20
    s_cmp_eq_u32 s20, 0
    s_cselect_b32 s26, 32, s26
    s_cselect_b32 s27, 0, 1
    s_cmp_eq_u32 s24, 0
    s_cselect_b32 s22, s20, s26
    s_xor_b32 s28, s24, s27
    s_cmp_eq_u32 s28, 0
    s_cselect_b32 s23, s20, s26
    s_cmp_eq_u32 s22, 0
    s_cselect_b32 s29, 32, 31
    """)
    p(f"""
    v_mul_u32_u24 v3, 5120, v2
    v_lshl_add_u32 v3, v1, 4, v3
    s_mul_i32 s30, s22, 40960
    s_lshl_b32 s31, s25, 8
    s_add_u32 s31, s30, s31
    s_add_u32 s32, s31, {8*2560}
    """)
    p(f"""
    v_lshlrev_b32 v7, 9, v2
    v_lshl_add_u32 v4, v1, 4, v7
    v_sub_u32 v8, s29, v1
    v_and_b32 v8, 31, v8
    v_subrev_u32 v9, 16, v8
    v_and_b32 v9, 31, v9
    v_lshl_add_u32 v5, v8, 4, v7
    v_lshl_add_u32 v6, v9, 4, v7
    s_lshl_b32 s35, s25, 11
    s_add_u32 s33, s30, s35
    s_add_u32 s33, s33, {XP_OFF}
    s_mul_i32 s34, s23, 40960
    s_add_u32 s34, s34, s35
    s_add_u32 s34, s34, {XP_OFF + 20480}
    v_lshlrev_b32 v10, 4, v0
    s_lshl_b32 s36, s21, 2
    s_add_u32 s36, s36, s3
    s_mul_i32 s37, s36, {3*20*1024}
    s_add_u32 s37, s37, {W1P_OFF}
    s_add_u32 s38, s37, {20*1024}
    s_add_u32 s39, s37, {40*1024}
    s_waitcnt lgkmcnt(0)
    """)
    VV, XX = 32, 112
    for i in range(5):
        for ks in range(2):
            for hl in range(2):
                p(f"buffer_load_dwordx4 {v(VV+16*i+8*ks+4*hl,4)}, v3, s[16:19], {'s32' if ks else 's31'} offen offset:{hl*2560 + (i&1)*512}")
        if i & 1:
            p("s_add_u32 s31, s31, 1024\ns_add_u32 s32, s32, 1024")
        for nt in range(2):
            p(f"buffer_load_dwordx4 {v(XX+16*i+8*nt,4)}, v4, s[16:19], s33 offen offset:{256*nt}")
            p(f"buffer_load_dwordx4 {v(XX+16*i+8*nt+4,4)}, {v(5+nt)}, s[16:19], s34 offen")
        if i < 4:
            p("s_add_u32 s33, s33, 4096\ns_add_u32 s34, s34, 4096")
    kord = []
    for i in range(5):
        kord += [2*i, 2*i+1, 10+2*i, 10+2*i+1]
    def w1load(idx):
        ks = kord[idx]
        for mt in range(3):
            p(f"s_add_u32 s40, s{37+mt}, {ks*1024}")
            p(f"buffer_load_dwordx4 {a(12*idx+4*mt,4)}, v10, s[16:19], s40 offen")
    NW_EARLY = 7
    for idx in range(NW_EARLY):
        w1load(idx)
    outstanding_after = 3 * NW_EARLY
    DD = 16
    p(f"""
    v_lshlrev_b32 v11, 6, v1
    v_add_u32 v11, s22, v11
    v_cvt_f32_u32 v11, v11
    v_mul_f32 v11, {fl(1.0/2048.0)}, v11
    v_add_f32 v12, 0.5, v11
    v_lshlrev_b32 v13, 2, v2
    v_cvt_f32_u32 v13, v13
    """)
    T = 192
    for nt in range(2):
        p(f"v_mul_f32 v14, {v(11+nt)}, v13")
        for ks in range(2):
            for qp in range(4):
                s2o = 16*ks + (0, 2, 1, 3)[qp]
                t = T + 2*(4*ks+qp)
                if s2o == 0:
                    p(f"v_cos_f32 {v(t)}, v14\nv_sin_f32 {v(t+1)}, v14")
                else:
                    p(f"v_fmamk_f32 {v(t+1)}, {v(11+nt)}, {fl(float(s2o))}, v14")
                    p(f"v_cos_f32 {v(t)}, {v(t+1)}\nv_sin_f32 {v(t+1)}, {v(t+1)}")
        p("s_nop 0")
        for k in range(8):
            p(f"v_cvt_pk_bf16_f32 {v(DD+8*nt+k)}, {v(T+2*k)}, {v(T+2*k+1)}")
    p(f"""
    s_lshl_b32 s40, s24, 11
    s_lshl_b32 s41, s25, 12
    s_add_u32 s40, s40, s41
    v_add_u32 v11, s40, v10
    s_lshl_b32 s40, s28, 11
    s_add_u32 s40, s40, s41
    s_add_u32 s40, s40, 40960
    v_lshlrev_b32 v14, 8, v2
    v_add_u32 v14, s40, v14
    v_lshrrev_b32 v12, 4, v8
    v_lshl_add_u32 v12, v12, 10, v14
    v_and_b32 v15, 15, v8
    v_lshl_add_u32 v12, v15, 4, v12
    v_lshrrev_b32 v13, 4, v9
    v_lshl_add_u32 v13, v13, 10, v14
    v_and_b32 v15, 15, v9
    v_lshl_add_u32 v13, v15, 4, v13
    s_mov_b32 s42, 0x00003f80
    s_mov_b32 s43, 0x3f800000
    """)
    p(f"""
    s_and_b32 s46, s21, 1
    s_lshr_b32 s47, s21, 1
    s_lshl_b32 s40, s46, 8
    v_lshlrev_b32 v3, 10, v2
    v_lshl_add_u32 v3, v1, 4, v3
    v_add_u32 v3, s40, v3
    s_cmp_eq_u32 s46, 0
    s_cselect_b64 vcc, -1, 0
    v_cndmask_b32 v15, v9, v8, vcc
    v_sub_u32 v4, 3, v2
    v_lshlrev_b32 v4, 10, v4
    v_lshl_add_u32 v4, v15, 4, v4
    v_lshlrev_b32 v5, 4, v15
    s_mul_i32 s44, s22, 81920
    s_add_u32 s44, s44, s41
    s_add_u32 s44, s44, {HN_OFF}
    s_mul_i32 s45, s23, 81920
    s_add_u32 s48, s45, {HN_OFF}
    s_sub_u32 s45, s48, s41
    s_add_u32 s45, s45, {152*512}
    s_lshl_b32 s49, s3, 1
    """)
    Y = 192
    HD = 208
    HM = 220
    PK = 228
    hd = lambda j: HD + j + (1 if j >= 3 else 0)
    nw = NW_EARLY
    for i in range(5):
        p.c(f"---- stage2 unit {i}")
        p(f"s_waitcnt vmcnt({min(63,(4-i)*8 + 4 + 3*nw)})")
        for ks in range(2):
            b = VV + 16*i + 8*ks
            p(f"v_swap_b32 {v(b+1)}, {v(b+4)}")
            p(f"v_swap_b32 {v(b+3)}, {v(b+6)}")
        p("s_nop 1")
        for ks in range(2):
            for nt in range(2):
                for j in range(2):
                    d = v(Y+8*nt+4*j, 4)
                    p(f"v_mfma_f32_16x16x32_bf16 {d}, {v(VV+16*i+8*ks+4*j,4)}, {v(DD+8*nt+4*ks,4)}, {'0' if ks == 0 else d}")
        p(f"s_waitcnt vmcnt({min(63,(4-i)*8 + 3*nw)})")
        p.nop(6)
        for nt in range(2):
            xd = XX + 16*i + 8*nt; xm = xd + 4
            for j in range(8):
                p(f"v_dot2_f32_bf16 {v(hd(j))}, {v(xd+(j>>1))}, {'s43' if j&1 else 's42'}, {v(Y+8*nt+j)}")
            if i == 4:
                lb = p.newlabel("K2_SP")
                p(f"""
                s_cmp_eq_u32 s25, 0
                s_cbranch_scc1 {lb}
                v_cmp_eq_u32 vcc, 3, v2
                s_nop 1
                v_cndmask_b32 {v(Y+8*nt+7)}, {v(Y+8*nt+7)}, 0, vcc
                """)
                p.label(lb)
            for j in range(8):
                m = 7 - j
                p(f"v_dot2_f32_bf16 {v(HM+m)}, {v(xm+(m>>1))}, {'s43' if m&1 else 's42'}, {v(Y+8*nt+j)}")
            for jp in range(4):
                p(f"v_cvt_pk_bf16_f32 {v(PK+jp)}, {v(hd(2*jp))}, {v(hd(2*jp+1))}")
            for jp in range(4):
                p(f"v_cvt_pk_bf16_f32 {v(PK+4+jp)}, {v(HM+7-2*jp)}, {v(HM+6-2*jp)}")
            p(f"ds_write_b128 v11, {v(PK,4)} offset:{i*8192 + nt*1024}")
            p(f"ds_write_b128 {v(12+nt)}, {v(PK+4,4)} offset:{i*8192}")
            lb = p.newlabel("K2_NS")
            p(f"""
            s_add_u32 s40, s49, {nt}
            s_cmp_lg_u32 s40, s21
            s_cbranch_scc1 {lb}
            buffer_store_dwordx3 {v(hd(0),3)}, v3, s[16:19], s44 offen offset:4
            buffer_store_dwordx4 {v(hd(3),4)}, v3, s[16:19], s44 offen offset:512
            buffer_store_dword {v(hd(7))}, v3, s[16:19], s44 offen offset:1024
            buffer_store_dwordx4 {v(HM+4,4)}, v4, s[16:19], s45 offen offset:512
            """)
            if i == 4:
                lb2 = p.newlabel("K2_SQ")
                p(f"""
                s_cmp_eq_u32 s25, 0
                s_cbranch_scc1 {lb2}
                s_mov_b32 exec_lo, 0
                s_mov_b32 exec_hi, 0xffff0000
                buffer_store_dword {v(HM)}, v5, s[16:19], s48 offen
                buffer_store_dword {v(HM+1)}, v4, s[16:19], s45 offen offset:4
                buffer_store_dword {v(HM+2)}, v4, s[16:19], s45 offen offset:8
                buffer_store_dword {v(HM+3)}, v4, s[16:19], s45 offen offset:12
                s_mov_b32 exec_lo, -1
                s_mov_b32 exec_hi, 0x0000ffff
                """)
                p.label(lb2)
            p(f"""
            buffer_store_dwordx4 {v(HM,4)}, v4, s[16:19], s45 offen
            s_mov_b64 exec, -1
            s_add_u32 s44, s44, 8192
            s_sub_u32 s45, s45, 8192
            """)
            p.label(lb)
        for k in range(3):
            if nw < 20:
                w1load(nw); nw += 1
    assert nw == 20
    CSB = 112
    p(f"""
    v_lshlrev_b32 v3, 4, v2
    s_mul_i32 s40, s36, 192
    s_add_u32 s40, s40, {CS_OFF}
    s_add_u32 s41, s40, {B1F_OFF-CS_OFF}
    """)
    for mt in range(3):
        p(f"buffer_load_dwordx4 {v(CSB+4*mt,4)}, v3, s[16:19], s40 offen offset:{64*mt}")
        p(f"buffer_load_dwordx4 {v(CSB+12+4*mt,4)}, v3, s[16:19], s41 offen offset:{64*mt}")
    for sl in range(4):
        p(f"""
        s_xor_b32 s40, s3, {sl}
        s_lshl_b32 s{52+sl}, s40, 10
        v_add_u32 {v(4+sl)}, s{52+sl}, v10
        v_add_u32 {v(12+sl)}, 40960, {v(4+sl)}
        """)
    ACC = 32
    BF = 80
    p(f"""
    v_mov_b32 v8, 0
    v_mov_b32 v9, 0
    v_mov_b32 v16, 0
    v_mov_b32 v17, 0
    s_mov_b32 s42, 0x3f803f80
    s_waitcnt lgkmcnt(0)
    s_barrier
    """)
    def rd(idx):
        ks = kord[idx]
        for sl in range(4):
            base = (12 if ks >= 10 else 4) + sl
            p(f"ds_read_b128 {v(BF+16*(idx&1)+4*sl,4)}, {v(base)} offset:{(ks%10)*4096}")
    rd(0)
    for idx in range(20):
        if idx < 19: rd(idx+1)
        p(f"s_waitcnt vmcnt({min(63, 3*(19-idx) + 6)}) lgkmcnt({4 if idx < 19 else 0})")
        k = 0
        for sl in range(4):
            for mt in range(3):
                d = v(ACC + 16*mt + 4*sl, 4)
                p(f"v_mfma_f32_16x16x32_bf16 {d}, {a(12*idx+4*mt,4)}, {v(BF+16*(idx&1)+4*sl,4)}, {'0' if idx == 0 else d}")
                if k < 8:
                    r = BF + 16*(idx&1) + (k >> 1)
                    if k & 1: p(f"v_dot2_f32_bf16 {v(16+((k>>1)&1))}, {v(r)}, {v(r)}, {v(16+((k>>1)&1))}")
                    else:     p(f"v_dot2_f32_bf16 {v(8+((k>>1)&1))}, {v(r)}, s42, {v(8+((k>>1)&1))}")
                k += 1
    p(f"""
    v_add_f32 v8, v8, v9
    v_add_f32 v9, v16, v17
    v_mov_b32 v16, v8
    v_mov_b32 v17, v9
    s_nop 1
    v_permlane16_swap_b32 v8, v16
    v_permlane16_swap_b32 v9, v17
    s_nop 1
    v_add_f32 v8, v8, v16
    v_add_f32 v9, v9, v17
    v_mov_b32 v16, v8
    v_mov_b32 v17, v9
    s_nop 1
    v_permlane32_swap_b32 v8, v16
    v_permlane32_swap_b32 v9, v17
    s_nop 1
    v_add_f32 v8, v8, v16
    v_add_f32 v9, v9, v17
    v_mul_f32 v8, {fl(1.0/640.0)}, v8
    v_mul_f32 v9, {fl(1.0/640.0)}, v9
    v_fma_f32 v9, -v8, v8, v9
    v_max_f32 v9, 0, v9
    v_add_f32 v9, {fl(1e-5)}, v9
    v_rsq_f32 v9, v9
    v_lshlrev_b32 v3, 3, v1
    v_add_u32 v3, {K2_LDS_ST}, v3
    v_mul_f32 v8, v8, v9
    s_lshl_b32 s40, s3, 7
    v_add_u32 v4, s40, v3
    ds_write_b64 v4, v[8:9]
    s_waitcnt lgkmcnt(0)
    s_barrier
    """)
    for sl in range(1, 4):
        p(f"""
        s_lshr_b32 s40, s{52+sl}, 3
        v_add_u32 v4, s40, v3
        ds_read_b64 {v(16+2*sl,2)}, v4
        """)
    p(f"""
    v_mov_b32 v16, v8
    v_mov_b32 v17, v9
    s_mul_i32 s40, s20, {4*48*1024}
    s_add_u32 s40, s40, {GF_OFF}
    s_lshl_b32 s41, s36, 10
    s_add_u32 s41, s41, s40
    s_lshr_b32 s42, s36, 1
    s_lshl_b32 s42, s42, 10
    s_add_u32 s42, s42, s40
    s_and_b32 s43, s36, 1
    s_lshl_b32 s43, s43, 3
    s_add_u32 s42, s42, s43
    s_add_u32 s42, s42, {32*1024}
    s_waitcnt vmcnt(0) lgkmcnt(0)
    """)
    O = 80
    for sl in range(4):
        c, r = v(16+2*sl), v(17+2*sl)
        for mt in range(3):
            for jj in range(4):
                x = v(ACC + 16*mt + 4*sl + jj)
                t = v(140 + jj)
                p(f"v_fma_f32 {t}, -{c}, {v(CSB+4*mt+jj)}, {v(CSB+12+4*mt+jj)}")
                p(f"v_fma_f32 {x}, {r}, {x}, {t}")
                p(f"v_max_f32 {x}, 0, {x}")
                p(f"v_mul_f32 {x}, {x}, {x}")
            for jp in range(2):
                p(f"v_cvt_pk_bf16_f32 {v(O+8*sl+2*mt+jp)}, {v(ACC+16*mt+4*sl+2*jp)}, {v(ACC+16*mt+4*sl+2*jp+1)}")
        p(f"""
        s_mul_i32 s43, s{52+sl}, 48
        s_add_u32 s44, s43, s41
        s_add_u32 s45, s43, s42
        buffer_store_dwordx4 {v(O+8*sl,4)}, v10, s[16:19], s44 offen
        buffer_store_dwordx2 {v(O+8*sl+4,2)}, v10, s[16:19], s45 offen
        """)
    p.label("K2_END")
    p("s_endpgm")
    return head(name) + p.text(), kd(name, 240, 240), f"; @launch kernel={name} grid=(256,1,1) block=(256,1,1) lds={K2_LDS}\n"
```

```python
from asmlib import *
from layout import *

K3_RS = 336
K3_TILE = 16 * K3_RS
K3_LDS = 16 * K3_TILE

def gen_k3(name="k3_kernel"):
    p = A()
    p(f"""
    s_cmp_ge_u32 s2, 256
    s_cbranch_scc1 K3_END
    s_load_dwordx2 s[16:17], s[0:1], 96
    s_load_dwordx2 s[4:5], s[0:1], 72
    s_load_dwordx2 s[8:9], s[0:1], 80
    v_lshrrev_b32 v1, 6, v0
    v_and_b32 v0, 63, v0
    v_readfirstlane_b32 s3, v1
    s_and_b32 s20, s2, 7
    s_lshl_b32 s20, s20, 2
    s_bfe_u32 s21, s2, 0x20003
    s_add_u32 s20, s20, s21
    s_lshr_b32 s21, s2, 5
    s_mov_b32 s18, {WS_SIZE}
    s_mov_b32 s19, 0x20000
    s_mov_b32 s6, 1280
    s_mov_b32 s7, 0x20000
    s_mov_b32 s10, 2621440
    s_mov_b32 s11, 0x20000
    v_and_b32 v1, 15, v0
    v_lshrrev_b32 v2, 4, v0
    v_lshlrev_b32 v10, 4, v0
    s_sub_u32 s26, 64, s20
    s_cmp_eq_u32 s20, 0
    s_cselect_b32 s26, 32, s26
    s_cmp_lt_u32 s3, 2
    s_cselect_b32 s22, s20, s26
    s_mul_i32 s24, s3, {12*1024}
    s_mul_i32 s25, s21, {5*48*1024}
    s_add_u32 s25, s25, s24
    s_add_u32 s25, s25, {W2P_OFF}
    s_mul_i32 s27, s20, {4*48*1024}
    s_add_u32 s27, s27, s24
    s_add_u32 s27, s27, {GF_OFF}
    """)
    for u in range(5):
        p(f"s_add_u32 s{32+u}, s25, {u*48*1024}")
    for sl in range(4):
        p(f"""
        s_xor_b32 s28, s3, {sl}
        s_mul_i32 s29, s28, {48*1024}
        s_add_u32 s{40+sl}, s27, s29
        s_mul_i32 s{44+sl}, s28, {K3_TILE}
        """)
    p(f"""
    v_lshlrev_b32 v3, 9, v2
    v_lshl_add_u32 v3, v1, 4, v3
    s_mul_i32 s28, s22, 81920
    s_mul_i32 s29, s21, {20*512}
    s_add_u32 s28, s28, s29
    s_and_b32 s29, s3, 1
    s_lshl_b32 s29, s29, 8
    s_add_u32 s28, s28, s29
    s_add_u32 s28, s28, {HN_OFF}
    s_add_u32 s29, s28, 4096
    s_add_u32 s30, s28, 8192
    s_waitcnt lgkmcnt(0)
    """)
    ACC = 32
    acc = lambda sl, u: ACC + 20*sl + 4*u
    NB = 7
    VB = 112
    def buf(kk, f):
        b = kk % NB
        return a(36*b + 4*f, 4)
    def loads(kk):
        off = (kk & 3) * 1024
        for u in range(5):
            p(f"buffer_load_dwordx4 {buf(kk,u)}, v10, s[16:19], s{32+u} offen offset:{off}")
        for sl in range(4):
            p(f"buffer_load_dwordx4 {buf(kk,5+sl)}, v10, s[16:19], s{40+sl} offen offset:{off}")
        if (kk & 3) == 3:
            for r in list(range(32, 37)) + list(range(40, 44)):
                p(f"s_add_u32 s{r}, s{r}, 4096")
    for u in range(5):
        p(f"buffer_load_dwordx4 {v(acc(0,u),4)}, v3, s[16:19], s{28+(u>>1)} offen offset:{(u&1)*2048}")
    for kk in range(6):
        loads(kk)
    p(f"""
    s_mul_i32 s48, s21, 160
    s_and_b32 s49, s3, 1
    s_lshl_b32 s49, s49, 10
    s_add_u32 s49, s49, s22
    s_mul_i32 s49, s49, 1280
    s_add_u32 s49, s49, s48
    s_mov_b32 s50, {64*1280}
    """)
    B2 = 112
    for it in range(5):
        p(f"""
        v_add_u32 v4, {64*it}, v0
        v_mul_u32_u24 v5, 3277, v4
        v_lshrrev_b32 v5, 16, v5
        v_mul_u32_u24 v6, 20, v5
        v_sub_u32 v6, v4, v6
        v_mul_u32_u24 v7, {K3_RS}, v5
        v_lshl_add_u32 v7, v6, 4, v7
        v_add_u32 {v(12+it)}, s44, v7
        v_lshlrev_b32 v6, 3, v6
        v_mul_lo_u32 v5, v5, s50
        v_add_u32 {v(17+it)}, v5, v6
        v_mov_b32 {v(22+it)}, v6
        """)
    p(f"""
    s_mul_i32 s51, s3, {4*K3_TILE}
    v_mul_u32_u24 v4, {K3_RS}, v1
    v_lshl_add_u32 v4, v2, 4, v4
    v_add_u32 v4, s51, v4
    """)
    issued = 6
    for kk in range(12):
        p(f"s_waitcnt vmcnt({9*(issued-1-kk) + (5 if kk == 11 else 0)})")
        if issued < 12:
            loads(issued); issued += 1
        if kk == 10:
            for it in range(5):
                p(f"buffer_load_dwordx2 {v(B2+2*it,2)}, {v(22+it)}, s[4:7], s48 offen")
        for sl in range(4):
            for u in range(5):
                d = v(acc(sl,u), 4)
                c = "0" if (kk == 0 and sl > 0) else d
                p(f"v_mfma_f32_16x16x32_bf16 {d}, {buf(kk,u)}, {buf(kk,5+sl)}, {c}")
    for sl in range(4):
        p(f"v_add_u32 {v(5+sl)}, s{44+sl}, v4")
    p.nop(4)
    for sl in range(4):
        for u in range(5):
            p(f"ds_write_b128 {v(5+sl)}, {v(acc(sl,u),4)} offset:{64*u}")
    p("s_waitcnt lgkmcnt(0)\ns_barrier")
    R = 128
    for it in range(5):
        for w in range(4):
            p(f"ds_read_b128 {v(R+16*it+4*w,4)}, {v(12+it)} offset:{w*4*K3_TILE}")
        if it == 2:
            p("s_waitcnt lgkmcnt(8)")
    p("s_mov_b32 s52, 0x00003f80\ns_mov_b32 s53, 0x3f800000\ns_waitcnt vmcnt(0)")
    for it in range(5):
        p(f"s_waitcnt lgkmcnt({min(15,4*(4-it))})")
        b = R + 16*it
        for jj in range(4):
            p(f"v_dot2_f32_bf16 {v(b+jj)}, {v(B2+2*it+(jj>>1))}, {'s53' if jj&1 else 's52'}, {v(b+jj)}")
        for jj in range(4):
            p(f"v_add_f32 {v(b+4+jj)}, {v(b+4+jj)}, {v(b+8+jj)}")
        for jj in range(4):
            p(f"v_add_f32 {v(b+jj)}, {v(b+jj)}, {v(b+12+jj)}")
        for jj in range(4):
            p(f"v_add_f32 {v(b+jj)}, {v(b+jj)}, {v(b+4+jj)}")
        p(f"v_cvt_pk_bf16_f32 {v(b+4)}, {v(b)}, {v(b+1)}")
        p(f"v_cvt_pk_bf16_f32 {v(b+5)}, {v(b+2)}, {v(b+3)}")
        p(f"buffer_store_dwordx2 {v(b+4,2)}, {v(17+it)}, s[8:11], s49 offen")
    p.label("K3_END")
    p("s_endpgm")
    return head(name) + p.text(), kd(name, 208, 252), f"; @launch kernel={name} grid=(256,1,1) block=(256,1,1) lds={K3_LDS}\n"
```

```python
import sys
from k1 import gen_k1
from k2 import gen_k2
from k3 import gen_k3
NAME = "sequential_preLN__spectral_fnet__dense_activation_squared_relu__prompt"
ref = open(f"cdna_kernels/{NAME}.s.ref").read().split("\n")
hdr = [l for l in ref if l.startswith(";") and "@launch" not in l and "Override launch" not in l and "grid=ceil" not in l]
ks = [gen_k1(), gen_k2(), gen_k3()]
out = "\n".join(hdr) + "\n" + "".join(k[2] for k in ks)
out += '.amdgcn_target "amdgcn-amd-amdhsa--gfx950"\n.text\n'
out += "".join(k[0] for k in ks)
out += '.section .rodata,"a"\n' + "".join(k[1] for k in ks)
dst = sys.argv[1] if len(sys.argv) > 1 else f"cdna_kernels/{NAME}.s"
open(dst, "w").write(out)
print("wrote", dst, len(out))
```
